```python
import torch

def _softmax(x, axis=-1):
    return torch.softmax(x, dim=axis)
def _gelu(x):
    return torch.nn.functional.gelu(x, approximate="tanh")
def _silu(x):
    return torch.nn.functional.silu(x)
def _sigmoid(x):
    return torch.sigmoid(x)
def _layernorm(x, axis=-1, eps=1e-5):
    m = x.mean(dim=axis, keepdim=True)
    v = x.var(dim=axis, keepdim=True, unbiased=False)
    return (x - m) / torch.sqrt(v + eps)
def _scatter_add(tgt, idx, src, axis=0):
    return tgt.clone().index_add_(axis, idx, src)
def _segment_sum(src, seg, n):
    out = torch.zeros((n,) + src.shape[1:], dtype=src.dtype)
    return out.index_add_(0, seg, src)
def _pad(x, pw):
    flat = tuple(v for pair in reversed(pw) for v in pair)
    return torch.nn.functional.pad(x, flat)

kernel_name = 'interleave_layers__sliding_block__glu_gated_glu__prompt'

def setup_inputs():

    _w = (lambda a: (lambda t: t.to(torch.bfloat16) if t.is_floating_point() else t)(torch.as_tensor(a)))
    def _A_setup():
        B, S, D = 1, 2048, 512
        return {
            "x": _w((lambda *s: torch.randn(*s, dtype=torch.bfloat16) * 0.05)(B, S, D)),
            "wqkv": _w((lambda *s: torch.randn(*s, dtype=torch.bfloat16) * 0.05)(D, 3 * D)),
            "wo": _w((lambda *s: torch.randn(*s, dtype=torch.bfloat16) * 0.05)(D, D)),
        }
    _A_in = _A_setup()

    def _B_setup():
        B, S, D, F = 1, 2048, 512, 1792
        return {
            "x": _w((lambda *s: torch.randn(*s, dtype=torch.bfloat16) * 0.05)(B, S, D)),
            "w_gate": _w((lambda *s: torch.randn(*s, dtype=torch.bfloat16) * 0.05)(D, F)),
            "w_up": _w((lambda *s: torch.randn(*s, dtype=torch.bfloat16) * 0.05)(D, F)),
            "w_down": _w((lambda *s: torch.randn(*s, dtype=torch.bfloat16) * 0.05)(F, D)),
        }
    _B_in = _B_setup()

    return {
        "A_x": _A_in["x"],
        "A_wqkv": _A_in["wqkv"],
        "A_wo": _A_in["wo"],
        "B_x": _B_in["x"],
        "B_w_gate": _B_in["w_gate"],
        "B_w_up": _B_in["w_up"],
        "B_w_down": _B_in["w_down"],
    }

def reference(A_x, A_wqkv, A_wo, B_x, B_w_gate, B_w_up, B_w_down):
    def _A_ref(x, wqkv, wo):
        B, S, D = x.shape
        H = 32; Dh = D // H; W = 256
        qkv = (lambda x, *d: x.permute(*d))((x @ wqkv).reshape(B, S, 3, H, Dh), 2, 0, 3, 1, 4)
        q, k, v = qkv[0], qkv[1], qkv[2]
        scores = torch.einsum("bhqd,bhkd->bhqk", q, k) * (Dh ** -0.5)
        idx = torch.arange(S)
        mask = (idx[:, None] - idx[None, :] >= 0) & (idx[:, None] - idx[None, :] < W)
        scores = torch.where(mask[None, None], scores, -1e9)
        p = _softmax(scores, axis=-1)
        o = torch.einsum("bhqk,bhkd->bhqd", p, v)
        return (lambda x, *d: x.permute(*d))(o, 0, 2, 1, 3).reshape(B, S, D) @ wo

    def _B_ref(x, w_gate, w_up, w_down):
        g = torch.einsum("bsd,df->bsf", x, w_gate)
        u = torch.einsum("bsd,df->bsf", x, w_up)
        h = _sigmoid(g) * u
        return torch.einsum("bsf,fd->bsd", h, w_down)

    x = A_x
    x = x + _A_ref(_layernorm(x, axis=-1), A_wqkv, A_wo)
    x = x + _B_ref(_layernorm(x, axis=-1), B_w_gate, B_w_up, B_w_down)
    x = x + _A_ref(_layernorm(x, axis=-1), A_wqkv, A_wo)
    x = x + _B_ref(_layernorm(x, axis=-1), B_w_gate, B_w_up, B_w_down)
    return x
```

```python
import re, copy

_REG = re.compile(r"^(-|abs\()?\s*([vsa])(?:(\d+)|\[(\d+):(\d+)\])\)?$")


def regs_of(op):
    op = op.strip()
    if op in ("vcc",):
        return [("s", "vcc")]
    if op in ("vcc_lo", "vcc_hi"):
        return [("s", "vcc")]
    if op in ("exec", "exec_lo", "exec_hi"):
        return [("s", "exec")]
    if op == "m0":
        return [("s", "m0")]
    m = _REG.match(op)
    if not m:
        return []
    k = m.group(2)
    if m.group(3) is not None:
        return [(k, int(m.group(3)))]
    return [(k, i) for i in range(int(m.group(4)), int(m.group(5)) + 1)]


TRANS = ("v_exp_f32", "v_log_f32", "v_rcp_f32", "v_rsq_f32", "v_sqrt_f32", "v_sin_f32", "v_cos_f32")


class I:
    def __init__(self, text, tag=None, raw=False):
        self.text = text
        self.tag = tag
        self.raw = raw
        self.rd = set()
        self.wr = set()
        self.kind = "raw"
        if raw:
            return
        t = text.split(";")[0].strip()
        parts = t.split(None, 1)
        mn = parts[0]
        self.mn = mn
        rest = parts[1] if len(parts) > 1 else ""
        ops = [o.strip() for o in rest.split(",")] if rest else []
        mods = []
        if ops:
            sp = ops[-1].split()
            ops[-1] = sp[0] if sp else ""
            mods = sp[1:]
        fixed = []
        depth_src = rest
        if "op_sel" in rest or "neg_" in rest or "quad_perm" in rest:
            idx = min([rest.find(x) for x in ("op_sel", "neg_", "quad_perm") if rest.find(x) >= 0])
            mods = rest[idx:].split()
            ops = [o.strip() for o in rest[:idx].strip().split(",")]
            sp = ops[-1].split()
            ops[-1] = sp[0]
            mods += sp[1:]
        self.ops = ops
        self.mods = mods
        R = lambda *idx: set(r for i in idx if i < len(ops) for r in regs_of(ops[i]))
        allr = lambda start: set(r for o in ops[start:] for r in regs_of(o))
        base = re.sub(r"_(e32|e64|dpp|sdwa)$", "", mn)
        self.base = base
        self.dpp = mn.endswith("_dpp") or any(m.startswith(("row_", "quad_perm", "wave_")) for m in mods)
        if mn.startswith("v_mfma"):
            self.kind = "mfma"
            self.wr = R(0)
            self.ab = R(1, 2)
            self.c = R(3)
            self.rd = self.ab | self.c
            self.passes = 8 if "32x32x16" in mn else 4
        elif mn.startswith("v_cmp"):
            self.kind = "valu"
            self.wr = R(0)
            self.rd = allr(1)
            if mn.startswith("v_cmpx"):
                self.wr.add(("s", "exec"))
        elif base in ("v_readfirstlane_b32", "v_readlane_b32"):
            self.kind = "valu"
            self.wr = R(0)
            self.rd = allr(1)
        elif base.startswith("v_permlane") and "swap" in base:
            self.kind = "valu"
            self.wr = R(0, 1)
            self.rd = R(0, 1)
        elif mn.startswith("v_"):
            self.kind = "valu"
            if base in ("v_add_co_u32", "v_sub_co_u32", "v_addc_co_u32", "v_subb_co_u32"):
                self.wr = R(0, 1)
                self.rd = allr(2)
            else:
                self.wr = R(0)
                self.rd = allr(1)
            if base.startswith(("v_fmac", "v_dot2c", "v_pk_fmac")) or self.dpp:
                self.rd |= R(0)
        elif mn.startswith("ds_"):
            self.kind = "ds"
            if mn.startswith(("ds_read", "ds_bpermute", "ds_permute", "ds_swizzle")) or "_rtn" in mn:
                self.wr = R(0)
                self.rd = allr(1)
            else:
                self.rd = allr(0)
        elif mn.startswith(("buffer_", "global_")):
            self.kind = "vmem"
            self.lds = ("lds" in mods) or ("_lds_" in mn)
            if mn.startswith(("buffer_inv", "buffer_wbl2")):
                pass
            elif self.lds:
                self.rd = allr(0) | {("s", "m0")}
            elif "_load" in mn:
                self.wr = R(0)
                self.rd = allr(1)
            elif "atomic" in mn and "sc0" in mods:
                self.wr = R(0)
                self.rd = allr(0)
            else:
                self.rd = allr(0)
            self.store = "_store" in mn or "atomic" in mn
            self.wide = self.store and ("x4" in mn or "x3" in mn)
            if self.store:
                self.data = R(0) if mn.startswith("buffer_") else R(1)
        elif mn.startswith(("s_load", "s_buffer_load", "s_memtime", "s_memrealtime")):
            self.kind = "smem"
            self.wr = R(0)
            self.rd = allr(1)
        elif mn.startswith("s_"):
            self.kind = "salu"
            if mn.startswith(("s_cmp", "s_bitcmp")):
                self.rd = allr(0)
            elif mn in ("s_waitcnt", "s_barrier", "s_nop", "s_endpgm", "s_sleep", "s_setprio") or mn.startswith(("s_branch", "s_cbranch")):
                pass
            else:
                self.wr = R(0)
                self.rd = allr(1)
                if "saveexec" in mn:
                    self.wr.add(("s", "exec"))
                if mn.startswith(("s_addk", "s_mulk")):
                    self.rd |= R(0)
        else:
            raise ValueError("unknown instruction: " + text)
        if base == "v_cndmask_b32" and len(ops) == 3:
            self.rd.add(("s", "vcc"))

    def states(self):
        if self.raw:
            return 0
        if self.mn == "s_nop":
            return int(self.ops[0], 0) + 1
        return 1


class WaitVM:
    def __init__(self, tag):
        self.tag = tag


class WaitLG:
    def __init__(self, tag=None):
        self.tag = tag


class State:
    def __init__(self):
        self.vm = []
        self.lg = []
        self.hist = []
        self.pos = 0

    def clone(self):
        s = State()
        s.vm = list(self.vm)
        s.lg = list(self.lg)
        s.hist = list(self.hist)
        s.pos = self.pos
        return s


def need_states(p, c):
    n = 0
    pv = set(r for r in p.wr if r[0] in "va")
    ps = set(r for r in p.wr if r[0] == "s")
    if p.kind == "valu":
        if c.kind == "mfma" and pv & c.rd:
            n = max(n, 2)
        if c.kind == "mfma" and ("s", "exec") in ps:
            n = max(n, 4)
        if p.base in TRANS and c.kind in ("valu", "mfma") and pv & c.rd:
            n = max(n, 1)
        if c.kind == "valu":
            if c.base.startswith("v_permlane") and pv & c.rd:
                n = max(n, 2)
            if c.base.startswith("v_permlane") and ("s", "exec") in ps:
                n = max(n, 4)
            if c.dpp and pv & c.rd:
                n = max(n, 2)
            if c.dpp and ("s", "exec") in ps:
                n = max(n, 5)
            if c.base in ("v_readfirstlane_b32", "v_readlane_b32"):
                if pv & c.rd:
                    n = max(n, 1)
                if ps & c.rd or ("s", "exec") in ps:
                    n = max(n, 4)
            if ps & c.rd:
                n = max(n, 2)
            if p.base.startswith("v_dot") and (pv & (c.rd | c.wr)):
                if not (c.base == p.base and not (pv & (c.rd - c.wr))):
                    n = max(n, 3)
        if c.kind == "vmem" and ps & c.rd:
            n = max(n, 5)
        if c.kind in ("salu", "smem") and ps & c.rd:
            n = max(n, 1)
    if p.kind == "salu":
        if ("s", "m0") in ps and c.kind == "vmem" and c.lds:
            n = max(n, 1)
    if p.kind == "mfma":
        big = p.passes == 8
        if c.kind == "mfma":
            if p.wr & c.ab:
                n = max(n, 12 if big else 8)
            if p.wr & c.c:
                if not (p.wr == c.c and p.passes == c.passes):
                    n = max(n, 10 if big else 6)
            elif p.wr & c.wr:
                n = max(n, 12 if big else 8)
        elif c.kind in ("valu", "vmem", "ds"):
            if p.wr & (c.rd | c.wr):
                n = max(n, 12 if big else 8)
            if c.kind == "valu" and p.c & c.wr:
                n = max(n, 7 if big else 3)
            if c.kind in ("vmem", "ds") and p.c & c.wr:
                n = max(n, 7 if big else 3)
    if p.kind == "vmem" and getattr(p, "wide", False):
        if c.wr & p.data:
            n = max(n, 2)
    if p.kind == "ds" and not p.wr and ("b128" in p.mn or "b96" in p.mn):
        if c.wr & p.rd:
            n = max(n, 2)
    return n


def finalize(seq, st=None):
    st = st or State()
    out = []

    def push(ins):
        need = 0
        for p, ppos in st.hist:
            n = need_states(p, ins)
            if n:
                have = st.pos - ppos - 1 + 0
                need = max(need, n - have)
        while need > 0:
            k = min(need, 16)
            nop = I(f"s_nop {k-1}")
            out.append("    " + nop.text)
            st.pos += k
            need -= k
        out.append("    " + ins.text)
        st.hist.append((ins, st.pos + ins.states() - 1))
        st.pos += ins.states()
        st.hist = [(p, q) for p, q in st.hist if st.pos - q <= 20]

    def do_wait(vm=None, lg=None):
        parts = []
        if vm is not None and vm < len(st.vm):
            vm = min(vm, 63)
            if vm < len(st.vm):
                parts.append(f"vmcnt({vm})")
                st.vm = st.vm[len(st.vm) - vm:] if vm else []
        if lg is not None and lg < len(st.lg):
            if any(e[2] for e in st.lg):
                lg = 0
            lg = min(lg, 15)
            if lg < len(st.lg):
                parts.append(f"lgkmcnt({lg})")
                st.lg = st.lg[len(st.lg) - lg:] if lg else []
        if parts:
            push(I("s_waitcnt " + " ".join(parts)))

    for ins in seq:
        if isinstance(ins, str):
            ins = I(ins)
        if isinstance(ins, WaitVM):
            idx = [i for i, e in enumerate(st.vm) if ins.tag is None or e[1] == ins.tag]
            if idx:
                do_wait(vm=len(st.vm) - 1 - idx[-1])
            continue
        if isinstance(ins, WaitLG):
            idx = [i for i, e in enumerate(st.lg) if ins.tag is None or e[1] == ins.tag]
            if idx:
                do_wait(lg=len(st.lg) - 1 - idx[-1])
            continue
        if ins.raw:
            out.append(ins.text)
            continue
        if ins.mn == "s_waitcnt":
            m = re.search(r"vmcnt\((\d+)\)", ins.text)
            if m:
                n = int(m.group(1))
                if n < len(st.vm):
                    st.vm = st.vm[len(st.vm) - n:] if n else []
            m = re.search(r"lgkmcnt\((\d+)\)", ins.text)
            if m:
                n = int(m.group(1))
                if n < len(st.lg):
                    st.lg = st.lg[len(st.lg) - n:] if n else []
            push(ins)
            continue
        touched = ins.rd | ins.wr
        vm = lg = None
        for i, e in enumerate(st.vm):
            if e[0] & touched:
                vm = len(st.vm) - 1 - i
        for i, e in enumerate(st.lg):
            if e[0] & touched:
                lg = len(st.lg) - 1 - i
        do_wait(vm, lg)
        push(ins)
        if ins.kind == "vmem":
            st.vm.append((set(ins.wr), ins.tag))
        elif ins.kind == "ds":
            st.lg.append((set(ins.wr), ins.tag, False))
        elif ins.kind == "smem":
            st.lg.append((set(ins.wr), ins.tag, True))
    return out, st


def label(name):
    return I(name + ":", raw=True)


def interleave(main, fill, start=0, end=None):
    def is_mfma(x):
        t = x if isinstance(x, str) else getattr(x, "text", "")
        return isinstance(t, str) and t.startswith("v_mfma")
    slots = [i for i, x in enumerate(main) if is_mfma(x)]
    slots = slots[start:end]
    n = len(slots)

    def cost(x):
        t = x if isinstance(x, str) else getattr(x, "text", None)
        if t is None:
            return 0
        if t.startswith(TRANS) or t.startswith("v_permlane"):
            return 2
        return 1
    total = sum(cost(x) for x in fill)
    out = []
    fi = 0
    acc = 0
    slotset = {s: k for k, s in enumerate(slots)}
    for i, x in enumerate(main):
        out.append(x)
        if i in slotset:
            k = slotset[i]
            target = total * (k + 1) / n
            while fi < len(fill) and (acc + cost(fill[fi]) / 2.0 <= target or k == n - 1):
                acc += cost(fill[fi])
                out.append(fill[fi])
                fi += 1
    assert fi == len(fill)
    return out


def v(a, n=1):
    return f"v{a}" if n == 1 else f"v[{a}:{a+n-1}]"


def s(a, n=1):
    return f"s{a}" if n == 1 else f"s[{a}:{a+n-1}]"
```

```python
import sys, math
sys.path.insert(0, "dev")
from asmlib import *

NAME = "interleave_layers__sliding_block__glu_gated_glu__prompt"
MB = 1 << 20
X_OFF = [0, 2 * MB, 4 * MB, 6 * MB]
Q_OFF = [8 * MB, 16 * MB]
K_OFF = [10 * MB, 18 * MB]
V_OFF = [12 * MB, 20 * MB]
O_OFF = [14 * MB, 22 * MB]
H_OFF = [24 * MB, 32 * MB]
ST_OFF = [40 * MB + i * 0x40000 for i in range(4)]
CS_OFF = 41 * MB
WS_BYTES = 256 * MB

LOG2E = 1.4426950408889634
import struct
def f32(x):
    return "0x%08x" % struct.unpack("<I", struct.pack("<f", x))[0]

KA_X, KA_WQKV, KA_WO, KA_BX, KA_WG, KA_WU, KA_WD, KA_OUT, KA_DBG, KA_WS = [8 * i for i in range(10)]

S_W, S_RB, S_C = 3, 4, 5
SRD_WS, SRD_A, SRD_B, SRD_C = 8, 12, 16, 20
P0 = 40


def srd(dst, ka_off, nbytes):
    return [f"s_load_dwordx2 {s(dst,2)}, s[0:1], {ka_off}"], [
        f"s_mov_b32 s{dst+2}, {hex(nbytes)}", f"s_mov_b32 s{dst+3}, 0x00020000"]


def prologue(srds, endlabel):
    a = ["s_cmp_ge_u32 s2, 256", f"s_cbranch_scc1 {endlabel}"]
    later = []
    for d, ka, nb in srds:
        l, m = srd(d, ka, nb)
        a += l
        later += m
    a += later
    a += ["v_lshrrev_b32 v1, 6, v0",
          "v_and_b32 v0, 63, v0",
          f"v_readfirstlane_b32 s{S_W}, v1",
          "s_and_b32 s6, s2, 7",
          "s_lshr_b32 s7, s2, 3",
          "s_lshl_b32 s6, s6, 1",
          f"s_lshr_b32 s{S_RB}, s7, 4",
          f"s_add_u32 s{S_RB}, s{S_RB}, s6",
          f"s_and_b32 s{S_C}, s7, 15",
          "v_lshlrev_b32 v1, 4, v0"]
    return a


def hsum32(x, t):
    return [f"v_mov_b32 v{t}, v{x}", f"v_permlane32_swap_b32 v{x}, v{t}", f"v_add_f32 v{x}, v{x}, v{t}"]


def tr_addr64(dst, t):
    return [f"v_lshrrev_b32 v{dst}, 5, v0",
            f"v_lshlrev_b32 v{dst}, 8, v{dst}",
            f"v_bfe_u32 v{t}, v0, 2, 2",
            f"v_lshl_add_u32 v{dst}, v{t}, 6, v{dst}",
            f"v_bfe_u32 v{t}, v0, 4, 1",
            f"v_lshl_add_u32 v{dst}, v{t}, 5, v{dst}",
            f"v_and_b32 v{t}, 3, v0",
            f"v_lshl_add_u32 v{dst}, v{t}, 3, v{dst}"]


def ln_stats(st, o_nmean, o_rstd, o_sd, t):
    a = []
    s1, s2 = st, st + 1
    for i in range(1, 8):
        a += [f"v_add_f32 v{s1}, v{s1}, v{st+2*i}", f"v_add_f32 v{s2}, v{s2}, v{st+2*i+1}"]
    a += hsum32(s1, t) + hsum32(s2, t)
    a += [f"v_mul_f32 v{o_nmean}, {f32(-1.0/512)}, v{s1}",
          f"v_mul_f32 v{s2}, {f32(1.0/512)}, v{s2}",
          f"v_fma_f32 v{s2}, -v{o_nmean}, v{o_nmean}, v{s2}",
          f"v_max_f32 v{s2}, 0, v{s2}",
          f"v_add_f32 v{s2}, {f32(1e-5)}, v{s2}",
          f"v_rsq_f32 v{o_rstd}, v{s2}"]
    if o_sd is not None:
        a += [f"v_sqrt_f32 v{o_sd}, v{s2}"]
    return a


def tr_read(dst, bases, off, second, tag=None):
    out = []
    for q in range(2):
        o = off + q * second
        b = bases[o >> 16]
        out.append(I(f"ds_read_b64_tr_b16 {v(dst+2*q,2)}, v{b} offset:{o & 0xffff}", tag=tag))
    return out


def mfma(d, a, b, c=None):
    cs = v(d, 16) if c is None else c
    return f"v_mfma_f32_32x32x16_bf16 {v(d,16)}, {v(a,4)}, {v(b,4)}, {cs}"


def pack(dst, src, n):
    return [f"v_cvt_pk_bf16_f32 v{dst+i}, v{src+2*i}, v{src+2*i+1}" for i in range(n)]


def k_prep():
    end = "prep_end"
    pro = prologue([(SRD_WS, KA_WS, WS_BYTES), (SRD_C, KA_X, 2 * MB)], end)
    pro[2:2] = ["s_load_dwordx2 s[24:25], s[0:1], %d" % KA_WQKV, "s_load_dwordx4 s[28:31], s[0:1], %d" % KA_WG]
    pro += [f"s_cmp_ge_u32 s{S_W}, 4", "s_cbranch_scc1 prep_cs"]
    a = ["s_lshr_b32 s6, s2, 2",
         "s_and_b32 s7, s2, 3",
         "s_lshl_b32 s7, s7, 2",
         f"s_add_u32 s7, s7, s{S_W}",
         "v_and_b32 v2, 31, v0",
         "v_lshlrev_b32 v3, 10, v2",
         "v_lshrrev_b32 v4, 5, v0",
         "v_lshl_add_u32 v3, v4, 3, v3",
         "s_lshl_b32 s36, s6, 15",
         "s_lshl_b32 s37, s7, 6",
         "s_add_u32 s37, s37, s36"]
    for j in range(4):
        a.append(f"buffer_load_dwordx2 {v(8+2*j,2)}, v3, {s(SRD_C,4)}, s37 offen offset:{16*j}")
    a += ["s_lshl_b32 s38, s7, 11",
          "s_add_u32 s38, s38, s36",
          f"s_add_u32 s38, s38, {hex(X_OFF[0])}" if X_OFF[0] else "s_nop 0",
          f"buffer_store_dwordx4 v[8:11], v1, {s(SRD_WS,4)}, s38 offen",
          f"buffer_store_dwordx4 v[12:15], v1, {s(SRD_WS,4)}, s38 offen offset:1024"]
    a += ["v_mov_b32 v20, 0", "v_mov_b32 v21, 0"]
    for j in range(8):
        a += [f"v_lshlrev_b32 v16, 16, v{8+j}", f"v_and_b32 v17, 0xffff0000, v{8+j}",
              "v_add_f32 v20, v20, v16", "v_fmac_f32 v21, v16, v16",
              "v_add_f32 v20, v20, v17", "v_fmac_f32 v21, v17, v17"]
    a += hsum32(20, 22) + hsum32(21, 22)
    a += ["s_lshl_b32 s36, s6, 12", "s_lshr_b32 s37, s7, 1", "s_lshl_b32 s37, s37, 9", "s_add_u32 s36, s36, s37",
          "s_and_b32 s37, s7, 1", "s_lshl_b32 s37, s37, 3", "s_add_u32 s36, s36, s37",
          f"s_add_u32 s36, s36, {hex(ST_OFF[0])}",
          "s_mov_b64 exec, 0xffffffff",
          f"buffer_store_dwordx2 v[20:21], v1, {s(SRD_WS,4)}, s36 offen",
          "s_endpgm"]
    b = [label("prep_cs"),
         "s_cmp_ge_u32 s2, 160", f"s_cbranch_scc1 {end}",
         "s_waitcnt lgkmcnt(0)",
         f"s_mov_b32 s{SRD_A}, s24", f"s_mov_b32 s{SRD_A+1}, s25", f"s_mov_b32 s{SRD_A+2}, {512*3072}",
         f"s_mov_b32 s{SRD_A+3}, 0x00020000",
         "s_mov_b32 s36, 3072", "s_mov_b32 s37, s2",
         "s_cmp_lt_u32 s2, 48", "s_cbranch_scc1 prep_cs2",
         f"s_mov_b32 s{SRD_A}, s28", f"s_mov_b32 s{SRD_A+1}, s29", f"s_mov_b32 s{SRD_A+2}, {512*3584}",
         "s_mov_b32 s36, 3584", "s_sub_u32 s37, s2, 48",
         "s_cmp_lt_u32 s2, 104", "s_cbranch_scc1 prep_cs2",
         f"s_mov_b32 s{SRD_A}, s30", f"s_mov_b32 s{SRD_A+1}, s31",
         "s_sub_u32 s37, s2, 104",
         label("prep_cs2"),
         "v_lshrrev_b32 v2, 2, v0",
         "v_mul_lo_u32 v2, v2, s36",
         "v_and_b32 v3, 3, v0",
         "v_lshl_add_u32 v2, v3, 4, v2",
         f"s_sub_u32 s38, s{S_W}, 4",
         "s_lshl_b32 s39, s38, 7",
         "s_mul_i32 s39, s39, s36",
         "s_lshl_b32 s37, s37, 6",
         "s_add_u32 s39, s39, s37",
         "s_lshl_b32 s36, s36, 4"]
    for i in range(8):
        b += [f"buffer_load_dwordx4 {v(16+4*i,4)}, v2, {s(SRD_A,4)}, s39 offen", "s_add_u32 s39, s39, s36"]
    for j in range(8):
        b.append(f"v_mov_b32 v{8+j}, 0")
    for i in range(8):
        for j in range(4):
            r = 16 + 4 * i + j
            b += [f"v_lshlrev_b32 v4, 16, v{r}", f"v_and_b32 v5, 0xffff0000, v{r}",
                  f"v_add_f32 v{8+2*j}, v{8+2*j}, v4", f"v_add_f32 v{9+2*j}, v{9+2*j}, v5"]
    for ror in (4, 8):
        for j in range(8):
            b.append(f"v_add_f32_dpp v{8+j}, v{8+j}, v{8+j} row_ror:{ror} row_mask:0xf bank_mask:0xf")
    b += ["v_lshrrev_b32 v4, 4, v0",
          "v_lshlrev_b32 v4, 7, v4",
          "v_lshl_add_u32 v4, v3, 5, v4",
          "s_lshl_b32 s38, s38, 9",
          "v_add_u32 v4, s38, v4",
          "ds_write_b128 v4, v[8:11]", "ds_write_b128 v4, v[12:15] offset:16",
          "s_waitcnt lgkmcnt(0)", "s_barrier",
          f"s_cmp_lg_u32 s{S_W}, 4", f"s_cbranch_scc1 {end}",
          "v_and_b32 v4, 31, v0", "v_lshlrev_b32 v4, 2, v4"]
    for i in range(16):
        b.append(f"ds_read_b32 v{16+i}, v4 offset:{128*i}")
    for i in range(1, 16):
        b.append(f"v_add_f32 v16, v16, v{16+i}")
    b += ["s_lshl_b32 s36, s2, 7", f"s_add_u32 s36, s36, {hex(CS_OFF)}",
          "s_mov_b64 exec, 0xffffffff",
          f"buffer_store_dword v16, v4, {s(SRD_WS,4)}, s36 offen",
          label(end), "s_endpgm"]
    o1, st = finalize(pro)
    o2, _ = finalize(a, st.clone())
    o3, _ = finalize(b, st.clone())
    return o1 + o2 + o3


def k_qkv():
    end = "qkv_end"
    pro = prologue([(SRD_WS, KA_WS, WS_BYTES), (SRD_A, KA_WQKV, 512 * 3072)], end)
    pro += [f"s_cmp_ge_u32 s{S_W}, 4", "s_cbranch_scc1 qkv_ld"]
    BF, ACC, AB, ST = 128, 64, 32, 112
    SCR = 96 * 1024
    a = [f"s_lshl_b32 s6, s{S_RB}, 2", f"s_add_u32 s6, s6, s{S_W}",
         "s_lshl_b32 s7, s6, 12", f"s_add_u32 s7, s7, s{P0+1}"]
    for i in range(4):
        a.append(f"buffer_load_dwordx4 {v(ST+4*i,4)}, v1, {s(SRD_WS,4)}, s7 offen offset:{1024*i}")
    a += ["v_lshrrev_b32 v2, 5, v0", "v_lshlrev_b32 v2, 4, v2",
          "v_and_b32 v3, 31, v0", "v_lshlrev_b32 v3, 2, v3",
          f"s_lshl_b32 s7, s{S_C}, 7", f"s_add_u32 s7, s7, {hex(CS_OFF)}", "s_add_u32 s36, s7, 4096"]
    for st_ in range(2):
        for q in range(4):
            a.append(f"buffer_load_dwordx4 {v(ACC+16*st_+4*q,4)}, v2, {s(SRD_WS,4)}, s7 offen offset:{2048*st_+32*q}")
    a.append(f"buffer_load_dword v4, v3, {s(SRD_WS,4)}, s36 offen")
    a += ["s_lshl_b32 s7, s6, 15", f"s_add_u32 s7, s7, s{P0}"]
    for kb in range(32):
        a.append(f"buffer_load_dwordx4 {v(BF+4*kb,4)}, v1, {s(SRD_WS,4)}, s7 offen offset:{1024*(kb&3)}")
        if kb & 3 == 3 and kb < 31:
            a.append("s_add_u32 s7, s7, 4096")
    a += tr_addr64(5, 7) + ["v_add_u32 v6, 0x10000, v5"]
    a += ln_stats(ST, 8, 9, None, 7)
    a += [f"s_lshl_b32 s36, s{S_W}, 8", f"s_add_u32 s36, s36, {SCR}",
          "v_add_u32 v10, s36, v3", "v_add_u32 v11, s36, v2",
          "ds_write_b32 v10, v8", "ds_write_b32 v10, v9 offset:128"]
    for q in range(4):
        a.append(f"ds_read_b128 {v(ACC+32+4*q,4)}, v11 offset:{32*q}")
    for q in range(4):
        a.append(f"ds_read_b128 {v(ST+4*q,4)}, v11 offset:{128+32*q}")
    for r in range(32):
        a.append(f"v_mul_f32 v{ACC+r}, v8, v{ACC+r}")
    for r in range(16):
        a.append(f"v_mul_f32 v{ACC+32+r}, v4, v{ACC+32+r}")
    def reads(kb):
        o = []
        for st_ in range(3):
            o += tr_read(AB + ((kb & 1) * 3 + st_) * 4, [5, 6], (kb * 3 + st_) * 1024, 512, tag=("A", kb))
        return o
    a += ["s_barrier"] + reads(0)
    for kb in range(32):
        if kb + 1 < 32:
            if (kb + 1) % 4 == 0:
                a.append("s_barrier")
            a += reads(kb + 1)
        a.append(WaitLG(("A", kb)))
        ab = AB + (kb & 1) * 12
        a += [mfma(ACC, ab, BF + 4 * kb), mfma(ACC + 16, ab + 4, BF + 4 * kb), mfma(ACC + 32, BF + 4 * kb, ab + 8)]
    a += [f"v_mul_f32 v10, {f32(0.25*LOG2E)}, v9",
          f"s_lshl_b32 s7, s{S_C}, 17", "s_lshl_b32 s36, s6, 10", "s_add_u32 s7, s7, s36", f"s_add_u32 s7, s7, s{P0+2}",
          "s_add_u32 s36, s7, 0x10000",
          "s_add_u32 s37, s7, 0x200000", "s_add_u32 s38, s7, 0x210000", "s_add_u32 s39, s7, 0x400000",
          "v_bfe_u32 v12, v0, 4, 1", "v_lshlrev_b32 v12, 16, v12",
          "v_lshl_add_u32 v12, v2, 4, v12", "v_and_b32 v13, 15, v0", "v_lshl_add_u32 v12, v13, 4, v12"]
    for st_, sc, so in ((0, 10, (7, 36)), (1, 9, (37, 38))):
        acc = ACC + 16 * st_
        for r in range(16):
            a.append(f"v_mul_f32 v{acc+r}, v{sc}, v{acc+r}")
        a += pack(AB + 8 * st_, acc, 8)
        a += [f"buffer_store_dwordx4 {v(AB+8*st_,4)}, v1, {s(SRD_WS,4)}, s{so[0]} offen",
              f"buffer_store_dwordx4 {v(AB+8*st_+4,4)}, v1, {s(SRD_WS,4)}, s{so[1]} offen"]
    acc = ACC + 32
    for r in range(16):
        a.append(f"v_mul_f32 v{acc+r}, v{ST+r}, v{acc+r}")
    a += pack(AB + 16, acc, 8)
    a += [f"buffer_store_dwordx4 {v(AB+16,4)}, v12, {s(SRD_WS,4)}, s39 offen",
          f"buffer_store_dwordx4 {v(AB+20,4)}, v12, {s(SRD_WS,4)}, s39 offen offset:512",
          "s_endpgm"]
    b = [label("qkv_ld"),
         f"s_sub_u32 s6, s{S_W}, 4",
         "v_lshrrev_b32 v2, 2, v0", "v_mul_u32_u24 v2, 3072, v2", "v_and_b32 v3, 3, v0", "v_lshl_add_u32 v2, v3, 4, v2",
         "s_mul_i32 s7, s6, 49152", f"s_lshl_b32 s36, s{S_C}, 6", "s_add_u32 s7, s7, s36",
         "s_mul_i32 m0, s6, 3072"]
    for j in range(8):
        for st_ in range(3):
            b.append(I(f"buffer_load_dwordx4 v2, {s(SRD_A,4)}, s7 offen offset:{1024*st_} lds", tag=("W", j)))
        if j < 7:
            b += ["s_add_u32 m0, m0, 12288", "s_add_u32 s7, s7, 196608"]
    for j in range(8):
        b += [WaitVM(("W", j)), "s_barrier"]
    b += [label(end), "s_endpgm"]
    o1, st = finalize(pro)
    o2, _ = finalize(a, st.clone())
    o3, _ = finalize(b, st.clone())
    return o1 + o2 + o3


def k_attn():
    end = "attn_end"
    pro = prologue([(SRD_WS, KA_WS, WS_BYTES)], end)
    QF, KF, VF = 4, 8, 44
    S0, S8, CM, OA = 116, 132, 148, 164
    SB = [180, 196, 212]
    T = 228
    NEG = f32(-1e30)
    a = [f"s_and_b32 s6, s{S_W}, 3", f"s_lshl_b32 s7, s{S_RB}, 2", "s_add_u32 s6, s6, s7",
         f"s_lshr_b32 s7, s{S_W}, 2", f"s_lshl_b32 s36, s{S_C}, 1", "s_add_u32 s7, s7, s36",
         "s_lshl_b32 s36, s7, 16", f"s_add_u32 s36, s36, s{P0}",
         "s_lshl_b32 s37, s6, 10", "s_add_u32 s38, s36, s37",
         f"buffer_load_dwordx4 {v(QF,4)}, v1, {s(SRD_WS,4)}, s38 offen",
         "s_add_u32 s38, s36, 0x200000",
         "s_sub_u32 s37, s37, 8192",
         "v_and_b32 v2, 32, v0", "v_lshlrev_b32 v2, 4, v2",
         "v_add_u32 v3, s37, v1"]
    for t in range(9):
        a += [f"v_max_i32 v{T+t}, v3, v2"]
        if t < 8:
            a += ["v_add_u32 v3, 0x400, v3"]
        a += [f"buffer_load_dwordx4 {v(KF+4*t,4)}, v{T+t}, {s(SRD_WS,4)}, s38 offen"]
    for t in range(9):
        a += [f"s_cmp_ge_u32 s6, {8-t}", "s_cselect_b32 s39, 0x3f803f80, 0"]
        for r in range(8):
            a.append(f"v_mov_b32 v{VF+8*t+r}, s39")
    a += ["v_lshrrev_b32 v2, 5, v0", "v_lshlrev_b32 v2, 8, v2", "v_and_b32 v3, 15, v0", "v_lshl_add_u32 v2, v3, 4, v2",
          "v_add_u32 v2, s37, v2",
          "s_add_u32 s38, s36, 0x400000",
          "s_mov_b32 exec_lo, 0x0000ffff", "s_mov_b32 exec_hi, 0x0000ffff"]
    for t in range(9):
        a.append("v_min_u32 v3, 0x80000000, v2")
        for u in range(2):
            a.append(f"buffer_load_dwordx4 {v(VF+8*t+4*u,4)}, v3, {s(SRD_WS,4)}, s38 offen offset:{512*u}")
        if t < 8:
            a.append("v_add_u32 v2, 0x400, v2")
    a += ["s_mov_b64 exec, -1"]
    a += ["v_and_b32 v2, 31, v0", "v_lshrrev_b32 v3, 5, v0", "v_lshlrev_b32 v3, 2, v3", "v_sub_u32 v2, v2, v3",
          f"v_mov_b32 v3, {NEG}"]
    for r in range(16):
        kl = 8 * (r >> 2) + (r & 3)
        a += [f"v_cmp_le_i32 vcc, {kl}, v2",
              f"v_cndmask_b32 v{S8+r}, v3, 0, vcc" , f"v_cndmask_b32 v{S0+r}, 0, v3, vcc"]
    M = 2
    order = [0, 8, 1, 2, 3, 4, 5, 6, 7]
    def sreg(t, k):
        return S0 if t == 0 else S8 if t == 8 else SB[k % 3]
    def qk(t, k, c):
        d = sreg(t, k)
        return mfma(d, KF + 4 * t, QF, v(d, 16) if t in (0, 8) else c)
    a += [qk(order[0], 0, "0"), qk(order[1], 1, "0")]
    first = True
    for k, t in enumerate(order):
        if k + 2 < 9:
            a.append(qk(order[k + 2], k + 2, "0"))
        d = sreg(t, k)
        if first:
            a.append(f"v_max3_f32 v{M}, v{d}, v{d+1}, v{d+2}")
            a.append(f"v_max_f32 v{M}, v{M}, v{d+3}")
            rng = range(4, 16, 2)
            first = False
        else:
            rng = range(0, 16, 2)
        for r in rng:
            a.append(f"v_max3_f32 v{M}, v{M}, v{d+r}, v{d+r+1}")
    a += [f"v_mov_b32 v3, v{M}", f"v_permlane32_swap_b32 v{M}, v3", f"v_max_f32 v{M}, v{M}, v3"]
    for r in range(16):
        a.append(f"v_sub_f32 v{CM+r}, 0, v{M}")
    a += [qk(1, 2, v(CM, 16)), qk(2, 3, v(CM, 16))]
    firstpv = True
    for k, t in enumerate(order):
        d = sreg(t, k)
        if k >= 2 and k + 2 < 9:
            a.append(qk(order[k + 2], k + 2, v(CM, 16)))
        if t in (0, 8):
            for r in range(16):
                a.append(f"v_sub_f32 v{d+r}, v{d+r}, v{M}")
        for u in range(2):
            for r in range(8):
                a.append(f"v_exp_f32 v{d+8*u+r}, v{d+8*u+r}")
            p = T + 4 * ((2 * k + u) % 4)
            a += pack(p, d + 8 * u, 4)
            a.append(mfma(OA, VF + 8 * t + 4 * u, p, "0" if firstpv else None))
            firstpv = False
    a += [f"v_rcp_f32 v2, v{OA+8}"]
    for r in range(8):
        a.append(f"v_mul_f32 v{OA+r}, v2, v{OA+r}")
    a += pack(T, OA, 4)
    a += ["s_lshl_b32 s36, s6, 5", "s_add_u32 s36, s36, s7", "s_lshl_b32 s36, s36, 10",
          f"s_add_u32 s36, s36, s{P0}", "s_add_u32 s36, s36, 0x600000",
          f"buffer_store_dwordx4 {v(T,4)}, v1, {s(SRD_WS,4)}, s36 offen",
          label(end), "s_endpgm"]
    o, _ = finalize(pro + a)
    return o


def k_gemm2(nm, KS, ka_w, final_variant):
    end = nm + "_end"
    srds = [(SRD_WS, KA_WS, WS_BYTES), (SRD_A, ka_w, KS * 16 * 1024)]
    if final_variant:
        srds.append((SRD_C, KA_OUT, 2 * MB))
    pro = prologue(srds, end)
    pro += [f"s_cmp_ge_u32 s{S_W}, 4", f"s_cbranch_scc1 {nm}_ld"]
    H = KS // 2
    CH = 4
    NCH = H // CH
    R = min(9, NCH)
    SCR = R * 16384
    BF, NBF = 128, 32
    A0, A1, AB, RS = 64, 80, 32, 96
    a = [f"s_and_b32 s6, s{S_W}, 1", f"s_lshr_b32 s7, s{S_C}, 3", "s_lshl_b32 s7, s7, 1", "s_add_u32 s6, s6, s7",
         f"s_lshl_b32 s7, s{S_RB}, 2", "s_add_u32 s6, s6, s7",
         f"s_lshr_b32 s7, s{S_W}, 1",
         f"s_and_b32 s36, s{S_C}, 7", "s_lshl_b32 s36, s36, 1", "s_add_u32 s36, s36, s7",
         "s_lshl_b32 s37, s6, 15", "s_lshl_b32 s38, s36, 11", "s_add_u32 s37, s37, s38",
         f"s_add_u32 s38, s37, s{P0+1}",
         f"buffer_load_dwordx4 {v(RS,4)}, v1, {s(SRD_WS,4)}, s38 offen",
         f"buffer_load_dwordx4 {v(RS+4,4)}, v1, {s(SRD_WS,4)}, s38 offen offset:1024",
         f"s_mul_i32 s38, s6, {KS*1024}", f"s_mul_i32 s39, s7, {H*1024}", "s_add_u32 s38, s38, s39",
         f"s_add_u32 s38, s38, s{P0}"]
    def bload(i):
        o = [f"buffer_load_dwordx4 {v(BF+4*(i%NBF),4)}, v1, {s(SRD_WS,4)}, s38 offen offset:{1024*(i&3)}"]
        if i & 3 == 3:
            o.append("s_add_u32 s38, s38, 4096")
        return o
    for i in range(min(H, NBF)):
        a += bload(i)
    a += ["v_lshrrev_b32 v2, 5, v0", "v_lshlrev_b32 v2, 9, v2",
          "v_bfe_u32 v3, v0, 2, 2", "v_lshl_add_u32 v2, v3, 7, v2",
          "v_bfe_u32 v3, v0, 3, 1", "v_xor_b32 v3, s7, v3", "v_lshl_add_u32 v2, v3, 6, v2",
          "v_bfe_u32 v3, v0, 4, 1", "v_lshl_add_u32 v2, v3, 5, v2",
          "v_and_b32 v3, 3, v0", "v_lshl_add_u32 v2, v3, 3, v2",
          f"s_mul_i32 s39, s7, {CH*2048}", "v_add_u32 v4, s39, v2",
          "v_add_u32 v5, 0x10000, v4", "v_add_u32 v6, 0x20000, v4",
          "v_xor_b32 v8, 64, v4", "v_xor_b32 v9, 64, v5", "v_xor_b32 v10, 64, v6"]
    for j in range(8):
        a += [f"v_lshlrev_b32 v{A0+2*j}, 16, v{RS+j}", f"v_and_b32 v{A0+2*j+1}, 0xffff0000, v{RS+j}"]
    NAB = 3
    def reads(i):
        j, ii = divmod(i, CH)
        off = (j % R) * 16384 + ii * 2048
        ab = AB + (i % NAB) * 8
        return tr_read(ab, [4, 5, 6], off, 1024, tag=("A", i)) + tr_read(ab + 4, [8, 9, 10], off, 1024, tag=("A", i))
    PD = 2
    a += ["s_barrier"]
    for i in range(PD):
        a += reads(i)
    for i in range(H):
        n = i + PD
        if n < H:
            if n % CH == 0:
                a.append("s_barrier")
            a += reads(n)
        a.append(WaitLG(("A", i)))
        ab = AB + (i % NAB) * 8
        bf = BF + 4 * (i % NBF)
        a += [mfma(A0, ab, bf), mfma(A1, ab + 4, bf, "0" if i == 0 else None)]
        if i + NBF < H:
            a += bload(i + NBF)
    a += [f"s_lshl_b32 s39, s{S_W}, 12", f"s_add_u32 s39, s39, {SCR}", "v_add_u32 v2, s39, v1",
          "v_xor_b32 v3, 0x2000, v2"]
    for q in range(4):
        a.append(f"ds_write_b128 v2, {v(A1+4*q,4)} offset:{1024*q}")
    a += ["s_waitcnt lgkmcnt(0)", "s_barrier"]
    for q in range(4):
        a.append(f"ds_read_b128 {v(AB+4*q,4)}, v3 offset:{1024*q}")
    for r in range(16):
        a.append(f"v_add_f32 v{A0+r}, v{A0+r}, v{AB+r}")
    a += pack(RS, A0, 8)
    fin = []
    if final_variant:
        fin = [f"s_cmp_eq_u32 s{P0+4}, 0", f"s_cbranch_scc1 {nm}_notfinal",
               "v_and_b32 v2, 31, v0", "v_lshlrev_b32 v2, 10, v2", "v_lshrrev_b32 v3, 5, v0", "v_lshl_add_u32 v2, v3, 3, v2",
               "s_lshl_b32 s38, s6, 15", "s_lshl_b32 s39, s36, 6", "s_add_u32 s38, s38, s39"]
        for q in range(4):
            fin.append(f"buffer_store_dwordx2 {v(RS+2*q,2)}, v2, {s(SRD_C,4)}, s38 offen offset:{16*q}")
        fin += ["s_endpgm", label(nm + "_notfinal")]
    a += fin
    a += [f"s_add_u32 s38, s37, s{P0+2}",
          f"buffer_store_dwordx4 {v(RS,4)}, v1, {s(SRD_WS,4)}, s38 offen",
          f"buffer_store_dwordx4 {v(RS+4,4)}, v1, {s(SRD_WS,4)}, s38 offen offset:1024"]
    a += [f"v_add_f32 v12, v{A0}, v{A0+1}", f"v_mul_f32 v13, v{A0}, v{A0}", f"v_fmac_f32 v13, v{A0+1}, v{A0+1}"]
    for r in range(2, 16):
        a += [f"v_add_f32 v12, v12, v{A0+r}", f"v_fmac_f32 v13, v{A0+r}, v{A0+r}"]
    a += hsum32(12, 14) + hsum32(13, 14)
    a += ["s_lshl_b32 s38, s6, 12", "s_lshr_b32 s39, s36, 1", "s_lshl_b32 s39, s39, 9", "s_add_u32 s38, s38, s39",
          "s_lshl_b32 s39, s7, 3", "s_add_u32 s38, s38, s39", f"s_add_u32 s38, s38, s{P0+3}",
          "s_mov_b64 exec, 0xffffffff",
          f"buffer_store_dwordx2 v[12:13], v1, {s(SRD_WS,4)}, s38 offen",
          "s_endpgm"]
    b = [label(nm + "_ld"),
         f"s_sub_u32 s6, s{S_W}, 4",
         "v_lshrrev_b32 v2, 3, v0", "v_lshlrev_b32 v2, 10, v2",
         "v_bfe_u32 v3, v0, 2, 1", "v_bfe_u32 v4, v0, 4, 1", "v_xor_b32 v3, v3, v4", "v_lshl_add_u32 v2, v3, 6, v2",
         "v_and_b32 v3, 3, v0", "v_lshl_add_u32 v2, v3, 4, v2",
         f"v_add_u32 v3, {8192-1024}, v2", f"v_add_u32 v4, {2*(8192-1024)}, v2", f"v_add_u32 v5, {3*(8192-1024)}, v2",
         "s_lshr_b32 s7, s6, 1", f"s_mul_i32 s7, s7, {H*16384}", "s_and_b32 s36, s6, 1", "s_lshl_b32 s36, s36, 15",
         "s_add_u32 s7, s7, s36", f"s_and_b32 s36, s{S_C}, 7", "s_lshl_b32 s36, s36, 7", "s_add_u32 s7, s7, s36",
         "s_lshl_b32 s37, s6, 12"]
    def dma(j):
        o = [f"s_add_u32 m0, s37, {(j % R) * 16384}"]
        for p in range(4):
            o.append(I(f"buffer_load_dwordx4 v{2+p}, {s(SRD_A,4)}, s7 offen offset:{1024*p} lds", tag=("W", j)))
        o.append(f"s_add_u32 s7, s7, {CH*16384}")
        return o
    for j in range(R):
        b += dma(j)
    for j in range(NCH):
        b += [WaitVM(("W", j)), "s_barrier"]
        if j >= 2 and j - 2 + R < NCH:
            b += dma(j - 2 + R)
    b += [label(end), "s_endpgm"]
    o1, st = finalize(pro)
    o2, _ = finalize(a, st.clone())
    o3, _ = finalize(b, st.clone())
    return o1 + o2 + o3, SCR + 16384


def k_gu():
    end = "gu_end"
    pro = prologue([(SRD_WS, KA_WS, WS_BYTES), (SRD_A, KA_WG, 512 * 3584), (SRD_B, KA_WU, 512 * 3584)], end)
    pro += [f"s_lshr_b32 s6, s{S_C}, 1", "s_mul_i32 s6, s6, 7", f"s_and_b32 s7, s{S_C}, 1",
            "s_lshl_b32 s36, s7, 2", "s_add_u32 s36, s36, s6",
            "s_lshl_b32 s37, s6, 1", "s_add_u32 s37, s37, 6", "s_add_u32 s37, s37, s7",
            f"s_cmp_ge_u32 s{S_W}, 4", "s_cbranch_scc1 gu_ld"]
    BF = 128
    G0, U0, MX, G1, U1 = 80, 96, 112, 48, 64
    AB = 24
    PK = 8
    NM, C1, SD = 16, 17, 18
    L1 = 96 * 1024
    a = [f"s_lshl_b32 s6, s{S_RB}, 2", f"s_add_u32 s6, s6, s{S_W}",
         "s_lshl_b32 s7, s6, 12", f"s_add_u32 s7, s7, s{P0+1}"]
    ST = AB
    for i in range(4):
        a.append(f"buffer_load_dwordx4 {v(ST+4*i,4)}, v1, {s(SRD_WS,4)}, s7 offen offset:{1024*i}")
    a += ["v_lshrrev_b32 v2, 5, v0", "v_lshlrev_b32 v2, 4, v2",
          "s_lshl_b32 s38, s36, 7", f"s_add_u32 s38, s38, {hex(CS_OFF + 1536*4)}", f"s_add_u32 s39, s38, {1792*4}",
          "s_lshl_b32 s7, s37, 6", f"s_add_u32 s7, s7, {hex(CS_OFF + 1536*4)}", f"s_add_u32 s33, s7, {1792*4}"]
    def csload(acc, sreg, unit):
        return [f"buffer_load_dwordx4 {v(acc+4*q,4)}, v2, {s(SRD_WS,4)}, s{sreg} offen offset:{128*unit+32*q}" for q in range(4)]
    a += csload(G0, 38, 0) + csload(U0, 39, 0)
    a += [f"buffer_load_dwordx4 {v(MX+4*q,4)}, v2, {s(SRD_WS,4)}, s7 offen offset:{32*q}" for q in range(2)]
    a += [f"buffer_load_dwordx4 {v(MX+8+4*q,4)}, v2, {s(SRD_WS,4)}, s33 offen offset:{32*q}" for q in range(2)]
    a += csload(G1, 38, 1) + csload(U1, 39, 1)
    a += ["s_lshl_b32 s7, s6, 15", f"s_add_u32 s7, s7, s{P0}"]
    for kb in range(32):
        a.append(f"buffer_load_dwordx4 {v(BF+4*kb,4)}, v1, {s(SRD_WS,4)}, s7 offen offset:{1024*(kb&3)}")
        if kb & 3 == 3 and kb < 31:
            a.append("s_add_u32 s7, s7, 4096")
    a += tr_addr64(4, 7) + ["v_add_u32 v5, 0x10000, v4", "v_add_u32 v6, 0x20000, v4"]
    a += ["v_bfe_u32 v7, v0, 4, 1", "v_lshlrev_b32 v19, 10, v7", "v_lshrrev_b32 v20, 5, v0", "v_xor_b32 v7, v7, v20",
          "v_lshl_add_u32 v19, v7, 7, v19", "v_bfe_u32 v7, v0, 2, 2", "v_lshl_add_u32 v19, v7, 5, v19",
          "v_and_b32 v7, 3, v0", "v_lshl_add_u32 v19, v7, 3, v19", "v_add_u32 v20, 0x10000, v19"]
    a += ln_stats(ST, NM, C1, SD, 7)
    a += [f"v_mul_f32 v{C1}, {f32(-LOG2E)}, v{C1}"]
    for r in range(48):
        a.append(f"v_mul_f32 v{G0+r}, v{NM}, v{G0+r}")
    init1 = [f"v_mul_f32 v{G1+r}, v{NM}, v{G1+r}" for r in range(32)]
    a += ["s_mul_i32 s34, s6, 112", "s_add_u32 s35, s34, s37", "s_lshl_b32 s35, s35, 10", f"s_add_u32 s35, s35, s{P0+2}",
          "s_lshl_b32 s7, s36, 1", "s_add_u32 s34, s34, s7", "s_lshl_b32 s34, s34, 10", f"s_add_u32 s34, s34, s{P0+2}"]

    def reads0(kb):
        j, ii = divmod(kb, 4)
        ab = AB + (kb & 1) * 12
        base = j * 12288
        return (tr_read(ab, [4, 5, 6], base + ii * 1024, 512, tag=("A", kb)) +
                tr_read(ab + 4, [4, 5, 6], base + 4096 + ii * 1024, 512, tag=("A", kb)) +
                tr_read(ab + 8, [19, 20], base + 8192 + (ii >> 1) * 2048 + (ii & 1) * 512, 256, tag=("A", kb)))

    def readsN(g, kb):
        base = L1 if g == 1 else 0
        n = 32 * (g - 1) + kb
        ab = AB + (n % 3) * 8
        return (tr_read(ab, [4, 5, 6], base + kb * 2048, 512, tag=("A", 32 * g + kb)) +
                tr_read(ab + 4, [4, 5, 6], base + kb * 2048 + 1024, 512, tag=("A", 32 * g + kb)))

    def glu(gr, ur, n, soff, immbase):
        o = []
        for blk in range(0, n, 8):
            for r in range(blk, blk + 8):
                o.append(f"v_mul_f32 v{gr+r}, v{C1}, v{gr+r}")
            for r in range(blk, blk + 8):
                o.append(f"v_exp_f32 v{gr+r}, v{gr+r}")
            for r in range(blk, blk + 8):
                o.append(f"v_fma_f32 v{gr+r}, v{gr+r}, v{SD}, v{SD}")
            for r in range(blk, blk + 8):
                o.append(f"v_rcp_f32 v{gr+r}, v{gr+r}")
            for r in range(blk, blk + 8):
                o.append(f"v_mul_f32 v{ur+r}, v{gr+r}, v{ur+r}")
            o += pack(PK + blk // 2, ur + blk, 4)
        st = [f"buffer_store_dwordx4 {v(PK+4*i,4)}, v1, {s(SRD_WS,4)}, s{soff} offen offset:{immbase+1024*i}" for i in range(n // 8)]
        return o, st

    g0 = ["s_barrier"] + reads0(0)
    for kb in range(32):
        if kb + 1 < 32:
            if (kb + 1) % 4 == 0:
                g0.append("s_barrier")
            g0 += reads0(kb + 1)
        g0.append(WaitLG(("A", kb)))
        ab = AB + (kb & 1) * 12
        g0 += [mfma(G0, ab, BF + 4 * kb), mfma(U0, ab + 4, BF + 4 * kb), mfma(MX, ab + 8, BF + 4 * kb)]
        if kb == 31:
            pass
    g0 = interleave(g0, init1, 3, 60)
    a += g0
    seq = {1: [], 2: []}
    steps = [(1, kb) for kb in range(32)] + [(2, kb) for kb in range(32)]
    pre = ["s_barrier"] + readsN(1, 0) + readsN(1, 1)
    for idx, (g, kb) in enumerate(steps):
        o = seq[g]
        if idx + 2 < 64:
            g2, k2 = steps[idx + 2]
            if k2 % 16 == 0:
                o.append("s_barrier")
            o += readsN(g2, k2)
        o.append(WaitLG(("A", 32 * g + kb)))
        ab = AB + (idx % 3) * 8
        ga, ua = (G1, U1) if g == 1 else (G0, U0)
        o += [mfma(ga, ab, BF + 4 * kb), mfma(ua, ab + 4, BF + 4 * kb)]
    e0, st0 = glu(G0, U0, 16, 34, 0)
    em, stm = glu(MX, MX + 8, 8, 35, 0)
    fill1 = e0 + csload(G0, 38, 2) + csload(U0, 39, 2) + st0 + em + stm + [f"v_mul_f32 v{G0+r}, v{NM}, v{G0+r}" for r in range(32)]
    a += pre + interleave(seq[1], fill1, 3, 62)
    e1, st1 = glu(G1, U1, 16, 34, 2048)
    a += interleave(seq[2], e1 + st1, 4, 60)
    e2, st2 = glu(G0, U0, 16, 7, 0)
    a += ["s_add_u32 s7, s34, 4096"] + e2 + st2 + ["s_endpgm"]

    b = [label("gu_ld"),
         f"s_sub_u32 s6, s{S_W}, 4",
         "v_lshrrev_b32 v2, 2, v0", "v_mul_u32_u24 v2, 3584, v2", "v_and_b32 v3, 3, v0", "v_lshl_add_u32 v2, v3, 4, v2",
         "s_and_b32 s7, s6, 1", "s_lshl_b32 s38, s7, 2",
         "v_lshrrev_b32 v3, 1, v0", "v_xor_b32 v3, s38, v3", "v_mul_u32_u24 v3, 3584, v3",
         "v_and_b32 v4, 1, v0", "v_lshl_add_u32 v3, v4, 4, v3",
         "s_waitcnt lgkmcnt(0)",
         "s_cmp_eq_u32 s7, 0",
         f"s_cselect_b32 s{SRD_C}, s{SRD_A}, s{SRD_B}", f"s_cselect_b32 s{SRD_C+1}, s{SRD_A+1}, s{SRD_B+1}",
         f"s_mov_b32 s{SRD_C+2}, {512*3584}", f"s_mov_b32 s{SRD_C+3}, 0x00020000",
         f"s_mul_i32 s30, s6, {16*3584}", "s_lshl_b32 s38, s36, 6", "s_add_u32 s30, s30, s38",
         "s_lshr_b32 s31, s6, 1", f"s_mul_i32 s31, s31, {32*3584}", "s_lshl_b32 s38, s37, 5", "s_add_u32 s31, s31, s38",
         "s_lshl_b32 s32, s6, 10",
         "s_lshl_b32 s33, s6, 11",
         "s_mov_b32 s34, s30"]
    for j in range(8):
        b += [f"s_add_u32 m0, s32, {j*12288}",
              I(f"buffer_load_dwordx4 v2, {s(SRD_A,4)}, s34 offen lds", tag=("W", j)),
              f"s_add_u32 m0, s32, {j*12288+4096}",
              I(f"buffer_load_dwordx4 v2, {s(SRD_B,4)}, s34 offen lds", tag=("W", j)),
              f"s_add_u32 m0, s32, {j*12288+8192}",
              I(f"buffer_load_dwordx4 v3, {s(SRD_C,4)}, s31 offen lds", tag=("W", j)),
              f"s_add_u32 s34, s34, {64*3584}", f"s_add_u32 s31, s31, {64*3584}"]
    def dmaN(g, half):
        base = L1 if g == 1 else 0
        o = []
        for jj in range(4):
            j = half * 4 + jj
            o += [f"s_add_u32 s34, s30, {j*64*3584 + 64*g}",
                  f"s_add_u32 m0, s33, {base + j*8192}",
                  I(f"buffer_load_dwordx4 v2, {s(SRD_A,4)}, s34 offen lds", tag=("W", 8 + 2 * (g - 1) + half)),
                  f"s_add_u32 m0, s33, {base + j*8192 + 1024}",
                  I(f"buffer_load_dwordx4 v2, {s(SRD_B,4)}, s34 offen lds", tag=("W", 8 + 2 * (g - 1) + half))]
        return o
    b += dmaN(1, 0) + dmaN(1, 1)
    for j in range(12):
        b += [WaitVM(("W", j)), "s_barrier"]
        if j == 4:
            b += dmaN(2, 0)
        if j == 7:
            b += dmaN(2, 1)
    b += [label(end), "s_endpgm"]
    o1, st = finalize(pro)
    o2, _ = finalize(a, st.clone())
    o3, _ = finalize(b, st.clone())
    return o1 + o2 + o3


def kd(name, vgpr=256, sgpr=64):
    return f""".p2align 6
.amdhsa_kernel {name}
  .amdhsa_next_free_vgpr {vgpr}
  .amdhsa_next_free_sgpr {sgpr}
  .amdhsa_accum_offset {(vgpr+3)//4*4}
  .amdhsa_group_segment_fixed_size 0
  .amdhsa_kernarg_size 80
  .amdhsa_user_sgpr_count 2
  .amdhsa_user_sgpr_kernarg_segment_ptr 1
  .amdhsa_system_sgpr_workgroup_id_x 1
.end_amdhsa_kernel"""


def build(upto=None):
    hdr = open("cdna_kernels/" + NAME + ".s.ref").read().split("; Override")[0].rstrip().splitlines()
    op_code, op_lds = k_gemm2("op", 32, KA_WO, False)
    dn_code, dn_lds = k_gemm2("dn", 112, KA_WD, True)
    bodies = {"prep": k_prep(), "qkv": k_qkv(), "attn": k_attn(), "op": op_code, "gu": k_gu(), "dn": dn_code}
    lds = {"prep": 2048, "qkv": 97 * 1024, "attn": 0, "op": op_lds, "gu": 160 * 1024, "dn": dn_lds}
    launches = [("prep", 0, [])]
    for l in range(2):
        xi = 2 * l
        launches += [
            ("qkv", l, [X_OFF[xi], ST_OFF[xi], Q_OFF[l]]),
            ("attn", l, [Q_OFF[l]]),
            ("op", l, [O_OFF[l], X_OFF[xi], X_OFF[xi + 1], ST_OFF[xi + 1]]),
            ("gu", l, [X_OFF[xi + 1], ST_OFF[xi + 1], H_OFF[l]]),
            ("dn", l, [H_OFF[l], X_OFF[xi + 1], X_OFF[2] if l == 0 else 0, ST_OFF[2], l]),
        ]
    if upto is not None:
        launches = launches[:upto]
    out = list(hdr)
    for k, l, _ in launches:
        out.append(f"; @launch kernel={k}{l}_kernel grid=(256,1,1) block=(512,1,1) lds={lds[k]}")
    out += ['.amdgcn_target "amdgcn-amd-amdhsa--gfx950"', ".text"]
    done = set()
    for k in bodies:
        ls = [x for x in launches if x[0] == k]
        if not ls:
            continue
        for (_, l, params) in reversed(ls):
            nm = f"{k}{l}_kernel"
            out += [f".globl {nm}", ".p2align 8", f".type {nm},@function", f"{nm}:"]
            for i, p in enumerate(params):
                out.append(f"    s_mov_b32 s{P0+i}, {hex(p)}")
            if l != ls[0][1]:
                out.append(f"    s_branch {k}_body")
        out.append(f"{k}_body:")
        out += bodies[k]
    out.append('.section .rodata,"a"')
    for k, l, _ in launches:
        out.append(kd(f"{k}{l}_kernel"))
    return "\n".join(out) + "\n"


if __name__ == "__main__":
    path = sys.argv[1] if len(sys.argv) > 1 else "cdna_kernels/" + NAME + ".s"
    upto = int(sys.argv[2]) if len(sys.argv) > 2 else None
    open(path, "w").write(build(upto))
    print("wrote", path)
```
